```python
import torch

def _softmax(x, axis=-1):
    return torch.softmax(x, dim=axis)
def _gelu(x):
    return torch.nn.functional.gelu(x, approximate="tanh")
def _silu(x):
    return torch.nn.functional.silu(x)
def _sigmoid(x):
    return torch.sigmoid(x)
def _layernorm(x, axis=-1, eps=1e-5):
    m = x.mean(dim=axis, keepdim=True)
    v = x.var(dim=axis, keepdim=True, unbiased=False)
    return (x - m) / torch.sqrt(v + eps)
def _scatter_add(tgt, idx, src, axis=0):
    return tgt.clone().index_add_(axis, idx, src)
def _segment_sum(src, seg, n):
    out = torch.zeros((n,) + src.shape[1:], dtype=src.dtype)
    return out.index_add_(0, seg, src)
def _pad(x, pw):
    flat = tuple(v for pair in reversed(pw) for v in pair)
    return torch.nn.functional.pad(x, flat)

kernel_name = 'interleave_layers__mha_block_cached__glu_gated_bilinear__decode'

def setup_inputs():

    _w = (lambda a: (lambda t: t.to(torch.bfloat16) if t.is_floating_point() else t)(torch.as_tensor(a)))
    def _A_setup():
        B, Sq, D = 2, 1, 448
        H, Sk, Dh = 16, 8192, 256
        return {
            "x": _w((lambda *s: torch.randn(*s, dtype=torch.bfloat16) * 0.05)(B, Sq, D)),
            "k_cache": _w((lambda *s: torch.randn(*s, dtype=torch.bfloat16) * 0.8)(B, H, Sk, Dh)),
            "v_cache": _w((lambda *s: torch.randn(*s, dtype=torch.bfloat16) * 1.6)(B, H, Sk, Dh)),
            "wq": _w((lambda *s: torch.randn(*s, dtype=torch.bfloat16) * 0.8)(D, H * Dh) * (D ** -0.5)),
            "wo": _w((lambda *s: torch.randn(*s, dtype=torch.bfloat16) * 1.6)(H * Dh, D) * ((H * Dh) ** -0.5)),
        }
    _A_in = _A_setup()

    def _B_setup():
        B, S, D, F = 2, 1, 448, 1792
        return {
            "x": _w((lambda *s: torch.randn(*s, dtype=torch.bfloat16) * 0.05)(B, S, D)),
            "w_gate": _w((lambda *s: torch.randn(*s, dtype=torch.bfloat16) * 0.4)(D, F) * (D ** -0.5)),
            "w_up": _w((lambda *s: torch.randn(*s, dtype=torch.bfloat16) * 0.4)(D, F) * (D ** -0.5)),
            "w_down": _w((lambda *s: torch.randn(*s, dtype=torch.bfloat16) * 0.4)(F, D) * (F ** -0.5)),
        }
    _B_in = _B_setup()

    return {
        "A_x": _A_in["x"],
        "A_k_cache": _A_in["k_cache"],
        "A_v_cache": _A_in["v_cache"],
        "A_wq": _A_in["wq"],
        "A_wo": _A_in["wo"],
        "B_x": _B_in["x"],
        "B_w_gate": _B_in["w_gate"],
        "B_w_up": _B_in["w_up"],
        "B_w_down": _B_in["w_down"],
    }

def reference(A_x, A_k_cache, A_v_cache, A_wq, A_wo, B_x, B_w_gate, B_w_up, B_w_down):
    def _A_ref(x, k_cache, v_cache, wq, wo):
        B, Sq, D = x.shape
        H, Dh = 16, 256
        q = (lambda x, *d: x.permute(*d))((x @ wq).reshape(B, Sq, H, Dh), 0, 2, 1, 3)
        scores = torch.einsum("bhqd,bhkd->bhqk", q, k_cache) * (Dh ** -0.5)
        p = _softmax(scores, axis=-1)
        o = torch.einsum("bhqk,bhkd->bhqd", p, v_cache)
        return (lambda x, *d: x.permute(*d))(o, 0, 2, 1, 3).reshape(B, Sq, H * Dh) @ wo

    def _B_ref(x, w_gate, w_up, w_down):
        g = torch.einsum("bsd,df->bsf", x, w_gate)
        u = torch.einsum("bsd,df->bsf", x, w_up)
        h = g * u
        return torch.einsum("bsf,fd->bsd", h, w_down)

    x = A_x
    x = x + _A_ref(_layernorm(x, axis=-1), A_k_cache, A_v_cache, A_wq, A_wo)
    x = x + _B_ref(_layernorm(x, axis=-1), B_w_gate, B_w_up, B_w_down)
    x = x + _A_ref(_layernorm(x, axis=-1), A_k_cache, A_v_cache, A_wq, A_wo)
    x = x + _B_ref(_layernorm(x, axis=-1), B_w_gate, B_w_up, B_w_down)
    return x
```

```python
import re


class R:
    __slots__ = ("k", "b", "n")

    def __init__(self, k, b, n=1):
        self.k, self.b, self.n = k, b, n

    def __str__(self):
        if self.n == 1:
            return f"{self.k}{self.b}"
        return f"{self.k}[{self.b}:{self.b + self.n - 1}]"

    def regs(self):
        return {(self.k, self.b + i) for i in range(self.n)}

    def __getitem__(self, i):
        if isinstance(i, slice):
            st = i.start or 0
            en = self.n if i.stop is None else i.stop
            return R(self.k, self.b + st, en - st)
        assert 0 <= i < self.n
        return R(self.k, self.b + i, 1)


def V(b, n=1):
    return R("v", b, n)


def A(b, n=1):
    return R("a", b, n)


def S(b, n=1):
    return R("s", b, n)


VCC = R("s", 106, 2)
M0 = R("s", 124, 1)
EXEC = R("s", 126, 2)


def _name(o):
    if o is VCC:
        return "vcc"
    if o is M0:
        return "m0"
    if o is EXEC:
        return "exec"
    if isinstance(o, R):
        return str(o)
    if isinstance(o, float):
        import struct
        if o in (0.0, 0.5, -0.5, 1.0, -1.0, 2.0, -2.0, 4.0, -4.0):
            return repr(o)
        return "0x%08x" % struct.unpack("<I", struct.pack("<f", o))[0]
    if isinstance(o, int):
        if -16 <= o <= 64:
            return str(o)
        return "0x%x" % (o & 0xFFFFFFFF)
    return str(o)


def _regs(*ops):
    s = set()
    for o in ops:
        if isinstance(o, R):
            s |= o.regs()
    return s


TRANS = ("v_exp_f32", "v_log_f32", "v_rcp_f32", "v_rsq_f32", "v_sqrt_f32")


class Ins:
    __slots__ = ("kind", "w", "r", "ws", "cr", "dw", "trans", "store_data")

    def __init__(self, kind, w=frozenset(), r=frozenset(), ws=1, cr=frozenset(), trans=False, store_data=frozenset()):
        self.kind, self.w, self.r, self.ws, self.cr, self.trans, self.store_data = kind, w, r, ws, cr, trans, store_data


class Asm:
    def __init__(self):
        self.lines = []
        self.hist = []
        self.vm_issued = 0
        self.vm_done = 0
        self.lg_issued = 0
        self.lg_done = 0
        self.nlabel = 0
        self.ninstr = 0

    def _push(self, text, ins):
        self.lines.append("    " + text)
        self.hist.append(ins)
        if len(self.hist) > 40:
            self.hist = self.hist[-40:]
        self.ninstr += 1

    def comment(self, t):
        self.lines.append("    ; " + t)

    def nop(self, n):
        while n > 0:
            k = min(n, 16)
            self._push(f"s_nop {k - 1}", Ins("nop", ws=k))
            n -= k

    def _need(self, checks):
        dist = 0
        short = 0
        for p in reversed(self.hist):
            req = checks(p)
            if req > dist:
                short = max(short, req - dist)
            dist += p.ws
            if dist >= 24:
                break
        if short:
            self.nop(short)

    def label(self, name=None):
        if name is None:
            self.nlabel += 1
            name = f"L{self.nlabel}"
        self.lines.append(f"{name}:")
        self._push("s_nop 7", Ins("nop", ws=8))
        return name

    def newlabel(self):
        self.nlabel += 1
        return f"L{self.nlabel}"

    def raw(self, text, ws=1):
        self._push(text, Ins("salu", ws=ws))

    def salu(self, op, dst, *srcs):
        ops = ([dst] if dst is not None else []) + list(srcs)
        self._push(f"{op} " + ", ".join(_name(o) for o in ops), Ins("salu", w=frozenset(_regs(dst)), r=frozenset(_regs(*srcs))))

    def branch(self, op, target):
        self._push(f"{op} {target}", Ins("salu"))

    def valu(self, op, dst, *srcs, mod="", sdst=None, rmw=False, extra_r=()):
        w = _regs(dst) | _regs(sdst)
        r = _regs(*srcs) | _regs(*extra_r)
        if rmw:
            r |= _regs(dst)
        isdpp = "quad_perm" in mod or "row_" in mod
        islane = op.startswith("v_readlane") or op.startswith("v_readfirstlane")
        isperm = op.startswith("v_permlane")
        if isperm:
            w = _regs(dst, *srcs)
            r = set(w)
        trans = op in TRANS
        vr = {x for x in r if x[0] != "s"}
        sr = {x for x in r if x[0] == "s"}
        vw = {x for x in w if x[0] != "s"}

        def chk(p):
            q = 0
            if p.kind == "mfma":
                if (p.w & vr) or (p.w & vw):
                    q = max(q, 8)
                if p.cr & vw:
                    q = max(q, 3)
            elif p.kind == "valu":
                if p.trans and not trans and (p.w & vr):
                    q = max(q, 1)
                if isdpp and (p.w & vr):
                    q = max(q, 2)
                if islane and (p.w & vr):
                    q = max(q, 1)
                if isperm and (p.w & vr):
                    q = max(q, 2)
                if p.w & sr:
                    q = max(q, 4 if islane else 2)
            elif p.kind == "vmem":
                if p.store_data & vw:
                    q = max(q, 2)
            return q

        self._need(chk)
        ops = [dst] + ([sdst] if sdst is not None else []) + list(srcs)
        self._push(f"{op} " + ", ".join(_name(o) for o in ops) + (" " + mod if mod else ""),
                   Ins("valu", w=frozenset(w), r=frozenset(r), trans=trans))

    def mfma(self, d, a, b, c):
        ab = _regs(a, b)
        cr = _regs(c)
        dw = _regs(d)

        def chk(p):
            q = 0
            if p.kind == "valu":
                if p.w & (ab | cr):
                    q = max(q, 2)
            elif p.kind == "mfma":
                if p.w & ab:
                    q = max(q, 8)
                if p.w & cr and p.w != cr:
                    q = max(q, 6)
                if (p.w & dw) and p.w != cr:
                    q = max(q, 8)
            return q

        self._need(chk)
        self._push(f"v_mfma_f32_16x16x32_bf16 {d}, {a}, {b}, {_name(c)}",
                   Ins("mfma", w=frozenset(dw), r=frozenset(ab | cr), cr=frozenset(cr)))

    def _memchk(self, r, w, lds_dma=False):
        vr = {x for x in r if x[0] != "s"}
        sr = {x for x in r if x[0] == "s"}

        def chk(p):
            q = 0
            if p.kind == "mfma":
                if (p.w & vr) or (p.w & w):
                    q = max(q, 8)
            elif p.kind == "valu":
                if p.w & sr:
                    q = max(q, 5)
            elif p.kind == "salu":
                if lds_dma and (p.w & M0.regs()):
                    q = max(q, 1)
            elif p.kind == "vmem":
                if p.store_data & w:
                    q = max(q, 1)
            return q

        self._need(chk)

    def bload(self, dst, voff, srd, soff=0, offset=0, flags="", width=None):
        n = dst.n if width is None else width
        op = {1: "buffer_load_dword", 2: "buffer_load_dwordx2", 4: "buffer_load_dwordx4"}[n]
        r = _regs(voff, srd, soff)
        w = _regs(dst)
        self._memchk(r, w)
        t = f"{op} {dst}, {voff}, {srd}, {_name(soff)} offen"
        if offset:
            assert 0 <= offset < 4096
            t += f" offset:{offset}"
        if flags:
            t += " " + flags
        self._push(t, Ins("vmem", w=frozenset(w), r=frozenset(r)))
        self.vm_issued += 1
        return self.vm_issued

    def bload_lds(self, voff, srd, soff=0, offset=0, flags=""):
        r = _regs(voff, srd, soff, M0)
        self._memchk(r, set(), lds_dma=True)
        t = f"buffer_load_dwordx4 {voff}, {srd}, {_name(soff)} offen"
        if offset:
            t += f" offset:{offset}"
        if flags:
            t += " " + flags
        t += " lds"
        self._push(t, Ins("vmem", r=frozenset(r)))
        self.vm_issued += 1
        return self.vm_issued

    def bstore(self, src, voff, srd, soff=0, offset=0, flags=""):
        op = {1: "buffer_store_dword", 2: "buffer_store_dwordx2", 4: "buffer_store_dwordx4"}[src.n]
        r = _regs(src, voff, srd, soff)
        self._memchk(r, set())
        t = f"{op} {src}, {voff}, {srd}, {_name(soff)} offen"
        if offset:
            assert 0 <= offset < 4096
            t += f" offset:{offset}"
        if flags:
            t += " " + flags
        self._push(t, Ins("vmem", r=frozenset(r), store_data=frozenset(_regs(src)) if src.n >= 3 else frozenset()))
        self.vm_issued += 1
        return self.vm_issued

    def batomic_add(self, src, voff, srd, soff=0, offset=0, flags=""):
        r = _regs(src, voff, srd, soff)
        self._memchk(r, set())
        t = f"buffer_atomic_add {src}, {voff}, {srd}, {_name(soff)} offen"
        if offset:
            t += f" offset:{offset}"
        if flags:
            t += " " + flags
        self._push(t, Ins("vmem", r=frozenset(r)))
        self.vm_issued += 1
        return self.vm_issued

    def wait_vm(self, tok=None):
        if tok is None:
            tok = self.vm_issued
        if tok <= self.vm_done:
            return
        n = self.vm_issued - tok
        if n <= 63:
            self._push(f"s_waitcnt vmcnt({n})", Ins("salu"))
        self.vm_done = tok

    def ds(self, op, dst, addr, *data, offset=0):
        r = _regs(addr, *data)
        w = _regs(dst)
        self._memchk(r, w)
        ops = ([dst] if dst is not None else []) + [addr] + list(data)
        t = f"{op} " + ", ".join(_name(o) for o in ops)
        if offset:
            assert 0 <= offset < 65536, offset
            t += f" offset:{offset}"
        self._push(t, Ins("ds", w=frozenset(w), r=frozenset(r)))
        self.lg_issued += 1
        return self.lg_issued

    def wait_lg(self, tok=None):
        if tok is None:
            tok = self.lg_issued
        if tok <= self.lg_done:
            return
        n = self.lg_issued - tok
        if n <= 15:
            self._push(f"s_waitcnt lgkmcnt({n})", Ins("salu"))
        else:
            self._push("s_waitcnt lgkmcnt(15)", Ins("salu"))
        self.lg_done = tok

    def force_all_done(self):
        self.vm_done = self.vm_issued
        self.lg_done = self.lg_issued

    def text(self):
        return "\n".join(self.lines) + "\n"
```

```python
import sys, math
from asmlib import *

NAME = "interleave_layers__mha_block_cached__glu_gated_bilinear__decode"
CSC = 0.0625 * math.log2(math.e)

NT = 11
NL = 6
NS_W = 21
NR_W = 20
C_S = 1
C_R = 4
POOL_BASE, POOL_N = 80, 20
TIMEOUT = 400000
KVFLAG = "nt"

H0 = 0x0000
H5 = 0x4000
H1ML = 0x8000
H1O = 0x10000
H2 = 0x90000
H3 = 0xA0000
H4 = 0xB0000
LDS_MISC = 147456
LQ = 0
LPART = 2048
LSTAGE = LPART + 8320
LACT = LSTAGE + 3584
LFLAG = LACT + 2048
assert LFLAG + 64 <= 16384

SRD_K, SRD_V, SRD_WS, SRD_DBG = S(4, 4), S(8, 4), S(12, 4), S(16, 4)
SRD_X, SRD_WQ, SRD_WO, SRD_G, SRD_U, SRD_D, SRD_OUT = S(20, 4), S(24, 4), S(28, 4), S(32, 4), S(36, 4), S(40, 4), S(44, 4)
sX, sI, sH, sSP, sW, sKV = S(48), S(49), S(50), S(51), S(52), S(53)
sBASE = [S(54), S(55)]
sOFF = [S(56), S(57), S(58), S(59)]
sM = [S(60), S(61)]
sTO = S(62)
sT0, sT1, sT2, sT3 = S(63), S(70), S(71), S(96)
sODD, sL48, sSAVE = S(64, 2), S(66, 2), S(68, 2)
sLDSB = S(97)
sN0 = S(98, 2)

vLANE, vOFFK, vOFFV, vL16 = V(0), V(1), V(2), V(3)
vMASK = [V(4), V(5), V(6), V(7)]
vC, vNC = V(8), V(9)
vMISC, vOADDR = V(10), V(11)
ACC = [[V(12, 4), V(16, 4)], [V(22, 4), V(26, 4)]]
vL = [V(20), V(30)]
vNMC = [V(21), V(31)]
QF = [V(32 + 4 * j, 4) for j in range(4)]
SC = [V(48 + i) for i in range(8)]
DT = [V(56, 4), V(60, 4)]
BT = [V(64, 4), V(68, 4)]
vT = [V(72 + i) for i in range(8)]


class Quad:
    __slots__ = ("loc", "tok", "lds")

    def __init__(self):
        self.loc = None
        self.tok = None
        self.lds = None


class TileRef:
    def __init__(self, batch, tidx, kind, slot=None):
        self.batch, self.tidx, self.kind, self.slot = batch, tidx, kind, slot
        self.q = {"K": [Quad() for _ in range(4)], "V": [Quad() for _ in range(4)]}


def inst_off(buf, j):
    return 128 * j if buf == "K" else (j >> 1) * 512 + (j & 1) * 256


class Attn:
    def __init__(self, a, tslots):
        self.a = a
        self.tslots = tslots
        self.pool = [V(POOL_BASE + 4 * i, 4) for i in range(POOL_N)]
        self.ring_out = 0
        self.ring_cap = 16
        self.busy = set()
        self.queues = {"ring": [], "T": [], "L": []}
        self.soff_state = [None] * 4
        self.soff_rr = 0
        self.first = [True, True]
        self.bt_rr = 0

    def soff(self, batch, tidx):
        key = (batch, tidx)
        for i, k in enumerate(self.soff_state):
            if k == key:
                return sOFF[i]
        i = self.soff_rr
        self.soff_rr = (i + 1) % 4
        self.soff_state[i] = key
        self.a.salu("s_add_u32", sOFF[i], sBASE[batch], tidx * 4096)
        return sOFF[i]

    def enqueue(self, t, order=("K", "V")):
        for buf in order:
            for j in range(4):
                self.queues[t.kind].append((t, buf, j))

    def _can(self, job):
        t, buf, j = job
        if t.kind == "ring":
            return self.ring_out < self.ring_cap and len(self.pool) > 0
        return (t.kind, t.slot, buf, j) not in self.busy

    def _issue(self, job):
        a = self.a
        t, buf, j = job
        q = t.q[buf][j]
        srd = SRD_K if buf == "K" else SRD_V
        voff = vOFFK if buf == "K" else vOFFV
        so = self.soff(t.batch, t.tidx)
        io = inst_off(buf, j)
        if t.kind == "ring":
            q.loc = self.pool.pop(0)
            self.ring_out += 1
            q.tok = a.bload(q.loc, voff, srd, so, io, KVFLAG)
        elif t.kind == "T":
            self.busy.add((t.kind, t.slot, buf, j))
            q.loc = self.tslots[t.slot][0 if buf == "K" else 1][j]
            q.tok = a.bload(q.loc, voff, srd, so, io, KVFLAG)
        else:
            self.busy.add((t.kind, t.slot, buf, j))
            q.lds = t.slot * 8192 + (0 if buf == "K" else 4096) + j * 1024
            a.salu("s_add_u32", M0, sLDSB, q.lds - io)
            q.tok = a.bload_lds(voff, srd, so, io, KVFLAG)

    def try_issue(self, maxn=1 << 30):
        for name in ("ring", "T", "L"):
            qu = self.queues[name]
            while qu and maxn > 0 and self._can(qu[0]):
                self._issue(qu.pop(0))
                maxn -= 1

    def retained(self, told):
        t = TileRef(told.batch, told.tidx, told.kind, told.slot)
        t.q = told.q
        return t

    def fetch(self, t, buf):
        a = self.a
        qs = t.q[buf]
        for q in qs:
            assert q.tok is not None, "tile consumed before its load was issued"
        if t.kind == "L":
            a.wait_vm(max(q.tok for q in qs))
            regs = [self.pool.pop(0) for _ in range(4)]
            toks = [a.ds("ds_read_b128", r, vL16, offset=q.lds) for r, q in zip(regs, qs)]
            return regs, toks
        return [q.loc for q in qs], None

    def release(self, t, buf, regs, keep):
        if t.kind == "ring":
            for r in regs:
                self.pool.append(r)
            self.ring_out -= 4
        elif t.kind == "L":
            for r in regs:
                self.pool.append(r)
            if not keep:
                for j in range(4):
                    self.busy.discard((t.kind, t.slot, buf, j))
        else:
            if not keep:
                for j in range(4):
                    self.busy.discard((t.kind, t.slot, buf, j))
        self.try_issue()

    def begin(self, ctx):
        self.first[ctx] = True
        self.a.valu("v_mov_b32", vL[ctx], 0)

    def load_q(self, which):
        a = self.a
        a.valu("v_and_b32", vT[0], 0x7F, vOFFK)
        a.valu("v_add_u32", vT[0], LDS_MISC + LQ + 512 * which, vT[0])
        for j in range(4):
            a.ds("ds_read_b128", QF[j], vT[0], offset=128 * j)
        a.wait_lg()

    def group(self, ctx, tiles, keep):
        a = self.a
        assert len(tiles) <= 4

        def extract(ti):
            D = DT[ti % 2]
            for k in range(2):
                a.valu("v_add_f32_dpp", SC[2 * ti + k], D[2 * k], D[2 * k + 1], mod="quad_perm:[1,0,3,2] row_mask:0xf bank_mask:0xf")

        for ti, t in enumerate(tiles):
            regs, toks = self.fetch(t, "K")
            D = DT[ti % 2]
            for j in range(4):
                if toks:
                    a.wait_lg(toks[j])
                else:
                    a.wait_vm(t.q["K"][j].tok)
                a.mfma(D, regs[j], QF[j], 0 if j == 0 else D)
            self.release(t, "K", regs, keep)
            if ti > 0:
                extract(ti - 1)
        extract(len(tiles) - 1)
        n = 2 * len(tiles)
        t0 = vT[0]
        if n == 2:
            a.valu("v_max_f32", t0, SC[0], SC[1])
            k = 2
        else:
            a.valu("v_max3_f32", t0, SC[0], SC[1], SC[2])
            k = 3
        while k < n:
            if k + 1 < n:
                a.valu("v_max3_f32", t0, t0, SC[k], SC[k + 1])
                k += 2
            else:
                a.valu("v_max_f32", t0, t0, SC[k])
                k += 1
        a.valu("v_max_f32_dpp", t0, t0, t0, mod="row_bcast:15 row_mask:0xa bank_mask:0xf")
        a.valu("v_max_f32_dpp", t0, t0, t0, mod="row_bcast:31 row_mask:0xc bank_mask:0xf")
        first = self.first[ctx]
        if not first:
            a.valu("v_max_f32", t0, sM[ctx], t0)
        a.valu("v_readlane_b32", sM[ctx], t0, 63)
        if first:
            a.valu("v_mul_f32", vNMC[ctx], sM[ctx], vNC)
        else:
            a.valu("v_mul_f32", vT[1], sM[ctx], vNC)
            a.valu("v_sub_f32", vT[2], vT[1], vNMC[ctx])
            a.valu("v_exp_f32", vT[2], vT[2])
            a.valu("v_mov_b32", vNMC[ctx], vT[1])
            a.valu("v_mul_f32", vL[ctx], vL[ctx], vT[2])
            for h in range(2):
                for i in range(4):
                    a.valu("v_mul_f32", ACC[ctx][h][i], ACC[ctx][h][i], vT[2])
        for k in range(n):
            a.valu("v_fma_f32", SC[k], SC[k], vC, vNMC[ctx])
        for k in range(n):
            a.valu("v_exp_f32", SC[k], SC[k])
        for ti, t in enumerate(tiles):
            regs, toks = self.fetch(t, "V")
            for k in range(2):
                p = SC[2 * ti + k]
                B = BT[self.bt_rr]
                self.bt_rr ^= 1
                a.valu("v_add_f32", vL[ctx], vL[ctx], p)
                a.valu("v_cvt_pk_bf16_f32", vT[3], p, p)
                for i in range(4):
                    a.valu("v_and_b32", B[i], vT[3], vMASK[i])
                for h in range(2):
                    if toks:
                        a.wait_lg(toks[2 * k + h])
                    else:
                        a.wait_vm(t.q["V"][2 * k + h].tok)
                    a.mfma(ACC[ctx][h], regs[2 * k + h], B, 0 if (first and ti == 0 and k == 0) else ACC[ctx][h])
            self.release(t, "V", regs, keep)
        self.first[ctx] = False

    def publish(self, ctx, area, cnt_idx):
        a = self.a
        l = vL[ctx]
        a.valu("v_add_f32_dpp", l, l, l, mod="row_bcast:15 row_mask:0xa bank_mask:0xf")
        a.valu("v_add_f32_dpp", l, l, l, mod="row_bcast:31 row_mask:0xc bank_mask:0xf")
        a.valu("v_readlane_b32", sT0, l, 63)
        a.salu("s_mov_b64", EXEC, sODD)
        base = LPART + area * 4160
        for h in range(2):
            for i in range(4):
                a.ds("ds_write_b32", None, vOADDR, ACC[ctx][h][i], offset=base + 4 * (128 * h + 8 * i))
        a.salu("s_mov_b64", EXEC, -1)
        a.valu("v_mov_b32", vT[0], sM[ctx])
        a.valu("v_mov_b32", vT[1], sT0)
        a.ds("ds_write_b64", None, vMISC, V(vT[0].b, 2), offset=base + 1024)
        a.wait_lg()
        if cnt_idx is not None:
            a.salu("s_mov_b64", EXEC, 1)
            a.valu("v_mov_b32", vT[0], 1)
            a.valu("v_mov_b32", vT[1], LDS_MISC + LFLAG + 4 + 4 * cnt_idx)
            a.ds("ds_add_u32", None, vT[1], vT[0])
            a.salu("s_mov_b64", EXEC, -1)
            a.wait_lg()


def wait_lds_flag(a, off, val, endlabel):
    a.wait_lg()
    a.valu("v_mov_b32", vT[7], LDS_MISC + off)
    L = a.label()
    Ld = a.newlabel()
    a.ds("ds_read_b32", vT[6], vT[7])
    a.raw("s_waitcnt lgkmcnt(0)")
    a.valu("v_readfirstlane_b32", sT0, vT[6])
    a.salu("s_cmp_ge_u32", None, sT0, val)
    a.branch("s_cbranch_scc1", Ld)
    a.raw("s_sleep 1")
    a.salu("s_sub_u32", sTO, sTO, 1)
    a.salu("s_cmp_eq_u32", None, sTO, 0)
    a.branch("s_cbranch_scc1", endlabel)
    a.branch("s_branch", L)
    a.label(Ld)
    a.lg_done = a.lg_issued


def set_lds_flag(a, off, val):
    a.wait_lg()
    a.valu("v_mov_b32", vT[6], val)
    a.valu("v_mov_b32", vT[7], LDS_MISC + off)
    a.ds("ds_write_b32", None, vT[7], vT[6])
    a.wait_lg()


def poll_gather(a, loads, endlabel, tmp):
    L = a.label()
    Ld = a.newlabel()
    regs = []
    for dst, voff, soff, off in loads:
        a.bload(dst, voff, SRD_WS, soff, off, "sc1")
        regs += [dst[i] for i in range(dst.n)]
    a.raw("s_waitcnt vmcnt(0)")
    k = 0
    if len(regs) == 1:
        a.valu("v_mov_b32", tmp, regs[0])
        k = 1
    elif len(regs) == 2:
        a.valu("v_max_u32", tmp, regs[0], regs[1])
        k = 2
    else:
        a.valu("v_max3_u32", tmp, regs[0], regs[1], regs[2])
        k = 3
    while k < len(regs):
        if k + 1 < len(regs):
            a.valu("v_max3_u32", tmp, tmp, regs[k], regs[k + 1])
            k += 2
        else:
            a.valu("v_max_u32", tmp, tmp, regs[k])
            k += 1
    a.valu("v_cmp_eq_u32", VCC, -1, tmp)
    a.branch("s_cbranch_vccz", Ld)
    a.salu("s_sub_u32", sTO, sTO, 1)
    a.salu("s_cmp_eq_u32", None, sTO, 0)
    a.branch("s_cbranch_scc1", endlabel)
    a.branch("s_branch", L)
    a.label(Ld)
    a.vm_done = a.vm_issued


def poll_counter(a, byte_off_reg, target, endlabel):
    a.wait_vm()
    L = a.label()
    Ld = a.newlabel()
    a.bload(vT[6], byte_off_reg, SRD_DBG, 0, 0, "sc1")
    a.raw("s_waitcnt vmcnt(0)")
    a.valu("v_readfirstlane_b32", sT0, vT[6])
    a.salu("s_cmp_ge_u32", None, sT0, target)
    a.branch("s_cbranch_scc1", Ld)
    a.salu("s_sub_u32", sTO, sTO, 1)
    a.salu("s_cmp_eq_u32", None, sTO, 0)
    a.branch("s_cbranch_scc1", endlabel)
    a.branch("s_branch", L)
    a.label(Ld)
    a.vm_done = a.vm_issued


def wave_sum(a, v, sdst):
    for r in (8, 4, 2, 1):
        a.valu("v_add_f32_dpp", v, v, v, mod=f"row_ror:{r} row_mask:0xf bank_mask:0xf")
    a.valu("v_add_f32_dpp", v, v, v, mod="row_bcast:15 row_mask:0xa bank_mask:0xf")
    a.valu("v_add_f32_dpp", v, v, v, mod="row_bcast:31 row_mask:0xc bank_mask:0xf")
    a.valu("v_readlane_b32", sdst, v, 63)


def round_bf16(a, regs, tmp):
    for i in range(0, len(regs), 2):
        a.valu("v_cvt_pk_bf16_f32", tmp, regs[i], regs[i + 1])
        a.valu("v_lshlrev_b32", regs[i], 16, tmp)
        a.valu("v_and_b32", regs[i + 1], 0xFFFF0000, tmp)


def build_srd(a, srd, ptr, nbytes):
    a.salu("s_mov_b32", srd[0], ptr[0])
    a.salu("s_and_b32", srd[1], ptr[1], 0xFFFF)
    a.salu("s_mov_b32", srd[2], nbytes)
    a.salu("s_mov_b32", srd[3], 0x00020000)


def gen():
    a = Asm()
    END = "L_end"
    a.salu("s_cmp_ge_u32", None, S(2), 256)
    a.branch("s_cbranch_scc1", END)
    a.raw("s_load_dwordx16 s[72:87], s[0:1], 0")
    a.raw("s_load_dwordx8 s[88:95], s[0:1], 64")
    a.salu("s_and_b32", sX, S(2), 7)
    a.salu("s_lshr_b32", sI, S(2), 3)
    a.salu("s_lshr_b32", sT0, sI, 4)
    a.salu("s_lshl_b32", sH, sX, 1)
    a.salu("s_add_u32", sH, sH, sT0)
    a.salu("s_and_b32", sSP, sI, 15)
    a.salu("s_lshl_b32", sKV, sH, 22)
    a.salu("s_lshl_b32", sT0, sSP, 18)
    a.salu("s_add_u32", sKV, sKV, sT0)
    a.salu("s_mov_b32", sTO, TIMEOUT)
    a.valu("v_lshrrev_b32", vT[0], 6, V(0))
    a.valu("v_readfirstlane_b32", sW, vT[0])
    a.valu("v_and_b32", vLANE, 63, V(0))
    vn, vg = vT[1], vT[2]
    a.valu("v_and_b32", vn, 15, vLANE)
    a.valu("v_lshrrev_b32", vg, 4, vLANE)
    a.valu("v_lshrrev_b32", vT[3], 1, vn)
    a.valu("v_lshlrev_b32", vOFFK, 9, vT[3])
    a.valu("v_lshl_add_u32", vOFFK, vg, 5, vOFFK)
    a.valu("v_and_b32", vT[3], 1, vn)
    a.valu("v_lshl_add_u32", vOFFK, vT[3], 4, vOFFK)
    a.valu("v_lshlrev_b32", vOFFV, 10, vg)
    a.valu("v_lshl_add_u32", vOFFV, vn, 4, vOFFV)
    a.valu("v_cmp_eq_u32", sODD, 1, vT[3])
    a.valu("v_and_b32", vT[4], 2, vn)
    a.valu("v_cmp_eq_u32", VCC, 2, vT[4])
    a.valu("v_mov_b32", vT[5], 0xFFFF)
    a.valu("v_mov_b32", vT[6], 0xFFFF0000)
    a.valu("v_cndmask_b32", vT[5], vT[5], vT[6], VCC)
    a.valu("v_cndmask_b32", vT[5], 0, vT[5], sODD)
    a.valu("v_lshrrev_b32", vT[4], 2, vn)
    for i in range(4):
        a.valu("v_cmp_eq_u32", VCC, i, vT[4])
        a.valu("v_cndmask_b32", vMASK[i], 0, vT[5], VCC)
    a.valu("v_mov_b32", vC, CSC)
    a.valu("v_mov_b32", vNC, -CSC)
    a.valu("v_cmp_gt_u32", sL48, 48, vLANE)
    a.valu("v_cmp_eq_u32", sN0, 0, vn)
    a.salu("s_mul_i32", sT0, sW, 1040)
    a.salu("s_add_u32", sT0, sT0, LDS_MISC)
    a.valu("v_mov_b32", vMISC, sT0)
    a.valu("v_lshl_add_u32", vOADDR, vg, 7, vMISC)
    a.valu("v_lshl_add_u32", vOADDR, vn, 1, vOADDR)
    a.valu("v_add_u32", vOADDR, -2, vOADDR)
    a.raw("s_waitcnt lgkmcnt(0)")
    build_srd(a, SRD_K, S(74, 2), 0x8000000)
    build_srd(a, SRD_V, S(76, 2), 0x8000000)
    build_srd(a, SRD_WS, S(94, 2), 0x20000000)
    build_srd(a, SRD_DBG, S(92, 2), 256)
    a.salu("s_cmp_eq_u32", None, sW, 0)
    a.branch("s_cbranch_scc1", "L_ctrl")

    a.salu("s_sub_u32", sT1, sW, 1)
    a.salu("s_mul_i32", sT0, sT1, NS_W * 4096)
    a.salu("s_add_u32", sBASE[0], sKV, sT0)
    a.salu("s_mul_i32", sT0, sT1, NR_W * 4096)
    a.salu("s_add_u32", sBASE[1], sKV, sT0)
    a.salu("s_add_u32", sBASE[1], sBASE[1], 0x4000000)
    a.salu("s_mul_i32", sLDSB, sT1, NL * 8192)
    a.valu("v_lshlrev_b32", vL16, 4, vLANE)
    a.valu("v_add_u32", vL16, sLDSB, vL16)
    tsl = []
    for i in range(8):
        tsl.append(([A(32 * i + 4 * j, 4) for j in range(4)], [A(32 * i + 16 + 4 * j, 4) for j in range(4)]))
    for i in range(3):
        tsl.append(([V(160 + 32 * i + 4 * j, 4) for j in range(4)], [V(160 + 32 * i + 16 + 4 * j, 4) for j in range(4)]))
    at = Attn(a, tsl)

    def mk(batch, n):
        T = [TileRef(batch, i, "T", i) for i in range(NT)]
        Lt = [TileRef(batch, NT + i, "L", i) for i in range(NL)]
        Rg = [TileRef(batch, i, "ring") for i in range(NT + NL, n)]
        return T, Lt, Rg

    def chunks(l, n):
        return [l[i:i + n] for i in range(0, len(l), n)]

    def enq_groups(groups):
        for g in groups:
            for t in g:
                at.enqueue(t, ("K",))
            for t in g:
                at.enqueue(t, ("V",))

    S1T, S1L, S1R = mk(0, NS_W)
    R1T, R1L, R1R = mk(1, NR_W)
    S2 = [TileRef(0, i, "ring") for i in range(NS_W)]
    R2R = [TileRef(1, i, "ring") for i in range(NT + NL, NR_W)]
    gS1 = chunks(S1R, 2) + chunks(S1T, 4) + chunks(S1L, 3)
    gR1 = chunks(R1R, 2) + chunks(R1T, 4) + chunks(R1L, 3)
    gS2 = chunks(S2, 2)
    gR2r = chunks(R2R, 2)
    enq_groups(gS1)
    enq_groups(gR1)
    enq_groups(gS2)
    enq_groups(gR2r)
    at.try_issue(40)
    a.raw("s_barrier")
    at.try_issue()
    wait_lds_flag(a, LFLAG, 1, END)
    at.load_q(0)
    at.begin(0)
    for g in gS1:
        at.group(0, g, keep=False)
    at.publish(0, 0, 0)
    at.load_q(1)
    at.begin(1)
    for g in gR1:
        at.group(1, g, keep=True)
    at.publish(1, 1, 1)
    at.ring_cap = 20
    at.try_issue()
    wait_lds_flag(a, LFLAG, 2, END)
    at.load_q(2)
    at.begin(0)
    for gi, g in enumerate(gS2):
        if gi >= len(gS2) - 3:
            at.ring_cap = 16
        at.group(0, g, keep=False)
    at.publish(0, 0, 2)
    wait_lds_flag(a, LFLAG, 3, END)
    at.load_q(3)
    at.begin(1)
    for g in chunks([at.retained(t) for t in R1T], 4) + chunks([at.retained(t) for t in R1L], 3) + gR2r:
        at.group(1, g, keep=True)
    at.publish(1, 1, 3)
    assert not any(at.queues.values())
    a.branch("s_branch", END)

    a.label("L_ctrl")
    a.force_all_done()
    build_srd(a, SRD_X, S(72, 2), 1792)
    build_srd(a, SRD_WQ, S(78, 2), 448 * 4096 * 2)
    build_srd(a, SRD_WO, S(80, 2), 4096 * 448 * 2)
    build_srd(a, SRD_G, S(84, 2), 448 * 1792 * 2)
    build_srd(a, SRD_U, S(86, 2), 448 * 1792 * 2)
    build_srd(a, SRD_D, S(88, 2), 1792 * 448 * 2)
    build_srd(a, SRD_OUT, S(90, 2), 1792)
    WQF = [A(4 * j, 4) for j in range(14)]
    WOF = [A(56 + 4 * j, 4) for j in range(16)]
    GUF = [A(120 + 4 * j, 4) for j in range(14)]
    DNF = [A(176 + 4 * j, 4) for j in range(7)]
    XA = [A(236, 8), A(244, 8)]
    vL8, vG16, vTR, vTRG, vNx, vW1, vW2, vW3 = [V(120 + i) for i in range(8)]
    G = lambda i, n=1: V(48 + i, n)
    QL = [V(48 + 4 * k, 4) for k in range(6)] + [V(80 + 4 * k, 4) for k in range(10)]
    QL2 = [V(128 + 4 * k, 4) for k in range(16)]
    MLR = [V(12, 4), V(192, 4)]
    a.valu("v_lshlrev_b32", vL16, 4, vLANE)
    a.valu("v_lshlrev_b32", vL8, 3, vLANE)
    a.valu("v_and_b32", vNx, 15, vLANE)
    a.valu("v_lshrrev_b32", vT[2], 4, vLANE)
    a.valu("v_lshlrev_b32", vG16, 4, vT[2])
    a.valu("v_lshrrev_b32", vT[3], 2, vNx)
    a.valu("v_lshl_add_u32", vT[3], vT[2], 3, vT[3])
    a.valu("v_lshlrev_b32", vT[3], 5, vT[3])
    a.valu("v_and_b32", vT[4], 3, vNx)
    a.valu("v_lshl_add_u32", vTR, vT[4], 3, vT[3])
    a.valu("v_add_u32", vTR, LDS_MISC, vTR)
    a.valu("v_and_b32", vT[5], 1, vT[4])
    a.valu("v_lshrrev_b32", vT[6], 1, vT[4])
    a.valu("v_lshl_add_u32", vTRG, vT[5], 4, vT[3])
    a.valu("v_lshl_add_u32", vTRG, vT[6], 3, vTRG)
    a.valu("v_add_u32", vTRG, LDS_MISC, vTRG)
    a.valu("v_mov_b32", vT[0], 0)
    a.valu("v_lshl_add_u32", vT[1], vNx, 2, vT[0])
    a.valu("v_add_u32", vT[1], LDS_MISC + LFLAG, vT[1])
    a.ds("ds_write_b32", None, vT[1], vT[0])
    XR = [V(128, 4), V(132, 4)]
    tx = []
    for b in range(2):
        tx.append(a.bload(XR[b][0:2], vL8, SRD_X, 0, b * 896))
        tx.append(a.bload(XR[b][2:4], vL8, SRD_X, 0, b * 896 + 512))
    a.valu("v_lshrrev_b32", vT[0], 1, vLANE)
    a.valu("v_lshlrev_b32", vW1, 13, vT[0])
    a.valu("v_and_b32", vT[1], 1, vLANE)
    a.valu("v_lshl_add_u32", vW1, vT[1], 4, vW1)
    a.salu("s_lshl_b32", sT0, sH, 9)
    a.salu("s_lshl_b32", sT1, sSP, 5)
    a.salu("s_add_u32", sT0, sT0, sT1)
    WT = [V(136 + 4 * j, 4) for j in range(16)]
    tw = []
    for j in range(14):
        a.salu("s_add_u32", sOFF[j % 4], sT0, j * 32 * 8192)
        tw.append(a.bload(WT[j], vW1, SRD_WQ, sOFF[j % 4], 0))
    a.wait_lg()
    a.raw("s_barrier")
    a.salu("s_lshl_b32", sT2, sX, 5)
    a.salu("s_add_u32", sT2, sT2, sI)
    CL = V(200, 4)
    for i in range(4):
        a.valu("v_mov_b32", CL[i], -1)
    a.valu("v_lshrrev_b32", vT[0], 5, vLANE)
    a.valu("v_lshlrev_b32", vT[0], 17, vT[0])
    a.valu("v_and_b32", vT[1], 31, vLANE)
    a.valu("v_lshl_add_u32", vT[0], vT[1], 4, vT[0])
    a.salu("s_lshl_b32", sT0, sT2, 9)
    a.salu("s_add_u32", sT0, sT0, H1O)
    a.bstore(CL, vT[0], SRD_WS, sT0, 0, "sc1")
    a.salu("s_add_u32", sT1, sT0, 0x40000)
    a.bstore(CL, vT[0], SRD_WS, sT1, 0, "sc1")
    a.salu("s_mov_b64", EXEC, 0xF)
    a.valu("v_lshlrev_b32", vT[0], 11, vLANE)
    a.salu("s_lshl_b32", sT0, sT2, 3)
    a.salu("s_add_u32", sT0, sT0, H1ML)
    a.bstore(CL[0:2], vT[0], SRD_WS, sT0, 0, "sc1")
    a.valu("v_lshlrev_b32", vT[0], 12, vLANE)
    a.salu("s_lshl_b32", sT0, sX, 9)
    a.salu("s_lshl_b32", sT1, sI, 4)
    a.salu("s_add_u32", sT0, sT0, sT1)
    a.salu("s_add_u32", sT0, sT0, H3)
    a.bstore(CL, vT[0], SRD_WS, sT0, 0, "sc1")
    a.valu("v_lshrrev_b32", vT[0], 1, vLANE)
    a.valu("v_lshlrev_b32", vT[0], 13, vT[0])
    a.valu("v_and_b32", vT[1], 1, vLANE)
    a.valu("v_lshl_add_u32", vT[0], vT[1], 4, vT[0])
    a.salu("s_lshl_b32", sT0, sH, 9)
    a.salu("s_lshl_b32", sT1, sSP, 5)
    a.salu("s_add_u32", sT0, sT0, sT1)
    a.salu("s_add_u32", sT0, sT0, H5)
    a.bstore(CL, vT[0], SRD_WS, sT0, 0, "sc1")
    a.salu("s_mov_b64", EXEC, 0xFFFF)
    a.salu("s_cmp_ge_u32", None, sI, 28)
    a.salu("s_cselect_b32", sT3, 0, -1)
    CZ = V(204, 4)
    for i in range(4):
        a.valu("v_mov_b32", CZ[i], sT3)
    a.valu("v_lshrrev_b32", vT[0], 2, vLANE)
    a.valu("v_lshlrev_b32", vT[0], 14, vT[0])
    a.valu("v_and_b32", vT[1], 3, vLANE)
    a.valu("v_lshl_add_u32", vT[0], vT[1], 4, vT[0])
    a.salu("s_lshl_b32", sT0, sX, 11)
    a.salu("s_lshl_b32", sT1, sI, 6)
    a.salu("s_add_u32", sT0, sT0, sT1)
    a.salu("s_add_u32", sT1, sT0, H2)
    a.bstore(CZ, vT[0], SRD_WS, sT1, 0, "sc1")
    a.salu("s_add_u32", sT1, sT0, H4)
    a.bstore(CZ, vT[0], SRD_WS, sT1, 0, "sc1")
    a.salu("s_mov_b64", EXEC, -1)

    def layernorm(xr, b, t):
        a.valu("v_add_f32", t[8], xr[0], xr[1])
        for k in range(2, 8):
            a.valu("v_add_f32", t[8], t[8], xr[k])
        wave_sum(a, t[8], sT0)
        a.valu("v_mov_b32", t[9], 1.0 / 448.0)
        a.valu("v_mul_f32", t[9], sT0, t[9])
        for k in range(8):
            a.valu("v_sub_f32", t[k], xr[k], t[9])
        for k in range(4, 8):
            a.valu("v_cndmask_b32", t[k], 0, t[k], sL48)
        a.valu("v_mul_f32", t[8], t[0], t[0])
        for k in range(1, 8):
            a.valu("v_fmac_f32", t[8], t[k], t[k], rmw=True)
        wave_sum(a, t[8], sT0)
        a.valu("v_mov_b32", t[9], 1.0 / 448.0)
        a.valu("v_mov_b32", t[8], 1e-5)
        a.valu("v_fma_f32", t[9], sT0, t[9], t[8])
        a.valu("v_rsq_f32", t[9], t[9])
        for k in range(8):
            a.valu("v_mul_f32", t[k], t[k], t[9])
        for k in range(4):
            a.valu("v_cvt_pk_bf16_f32", t[k], t[2 * k], t[2 * k + 1])
        a.valu("v_add_u32", t[8], LDS_MISC, vL8)
        a.ds("ds_write_b64", None, t[8], V(t[0].b, 2), offset=LACT + 1024 * b)
        a.ds("ds_write_b64", None, t[8], V(t[2].b, 2), offset=LACT + 1024 * b + 512)

    def gemv_act(frags, b, D, breg0=None):
        a.wait_lg()
        a.valu("v_add_u32", vT[5], LDS_MISC, vG16)
        toks = []
        for j in range(len(frags)):
            toks.append(a.ds("ds_read_b128", QL[j], vT[5], offset=LACT + 1024 * b + 64 * j))
        for j in range(len(frags)):
            a.wait_lg(toks[j])
            a.mfma(D, frags[j], QL[j], 0 if j == 0 else D)

    def stage_frags(temps, toks, frags, lds_off, trreg):
        a.valu("v_add_u32", vT[5], LDS_MISC, vL16)
        for j, (tr, tk) in enumerate(zip(temps, toks)):
            a.wait_vm(tk)
            a.ds("ds_write_b128", None, vT[5], tr, offset=lds_off + 1024 * j)
        a.wait_lg()
        for j, f in enumerate(frags):
            a.ds("ds_read_b64_tr_b16", f[0:2], trreg, offset=lds_off + 1024 * j)
            a.ds("ds_read_b64_tr_b16", f[2:4], trreg, offset=lds_off + 1024 * j + 128)
        a.wait_lg()

    def get_x(b, regs):
        for k in range(8):
            a.valu("v_accvgpr_read_b32", regs[k], XA[b][k])

    def put_x(b, regs):
        for k in range(8):
            a.valu("v_accvgpr_write_b32", XA[b][k], regs[k])

    XF = [[V(208 + 8 * b + k) for k in range(8)] for b in range(2)]
    LT = [V(224 + k) for k in range(10)]
    for b in range(2):
        a.wait_vm(tx[2 * b + 1])
        for k in range(4):
            a.valu("v_lshlrev_b32", XF[b][2 * k], 16, XR[b][k])
            a.valu("v_and_b32", XF[b][2 * k + 1], 0xFFFF0000, XR[b][k])
        for k in range(4, 8):
            a.valu("v_cndmask_b32", XF[b][k], 0, XF[b][k], sL48)
        put_x(b, XF[b])
        layernorm(XF[b], b, LT)
    stage_frags(WT[0:7], tw[0:7], WQF[0:7], LPART, vTR)
    stage_frags(WT[7:14], tw[7:14], WQF[7:14], LPART, vTR)

    def q_publish(b, Hbase):
        D = V(112, 4)
        gemv_act(WQF, b, D, 48)
        a.valu("v_cvt_pk_bf16_f32", vT[0], D[0], D[1])
        a.valu("v_cvt_pk_bf16_f32", vT[1], D[2], D[3])
        a.valu("v_lshrrev_b32", vT[2], 1, vG16)
        a.salu("s_lshl_b32", sT0, sH, 9)
        a.salu("s_lshl_b32", sT1, sSP, 5)
        a.salu("s_add_u32", sT0, sT0, sT1)
        a.salu("s_add_u32", sT0, sT0, Hbase + 8192 * b)
        a.salu("s_mov_b64", EXEC, sN0)
        a.bstore(V(vT[0].b, 2), vT[2], SRD_WS, sT0, 0, "sc1")
        a.salu("s_mov_b64", EXEC, -1)

    def q_to_lds(regs, which):
        a.valu("v_add_u32", vT[5], LDS_MISC, vL8)
        a.ds("ds_write_b64", None, vT[5], regs, offset=LQ + 512 * which)

    q_publish(0, H0)
    q_publish(1, H0)
    a.wait_vm()
    a.salu("s_mov_b64", EXEC, 3)
    a.salu("s_lshl_b32", sT0, sH, 2)
    a.salu("s_add_u32", sT0, sT0, 64)
    a.valu("v_mul_lo_u32", vT[0], vLANE, sT0)
    a.valu("v_mov_b32", vT[1], 1)
    a.batomic_add(vT[1], vT[0], SRD_DBG, 0, 0, "sc1")
    a.salu("s_mov_b64", EXEC, -1)
    a.valu("v_mov_b32", vT[4], sT0)
    poll_counter(a, vT[4], 16, END)
    a.salu("s_lshl_b32", sT0, sH, 9)
    a.salu("s_add_u32", sT0, sT0, H0)
    a.salu("s_add_u32", sT1, sT0, 8192)
    a.bload(G(0, 2), vL8, SRD_WS, sT0, 0, "sc1")
    a.bload(G(2, 2), vL8, SRD_WS, sT1, 0, "sc1")
    a.wait_vm()
    q_to_lds(G(0, 2), 0)
    q_to_lds(G(2, 2), 1)
    set_lds_flag(a, LFLAG, 1)

    ctsl = [([A(204 + 4 * j, 4) for j in range(4)], [A(220 + 4 * j, 4) for j in range(4)])]
    for i in range(4):
        ctsl.append(([V(128 + 32 * i + 4 * j, 4) for j in range(4)], [V(128 + 32 * i + 16 + 4 * j, 4) for j in range(4)]))
    ct = Attn(a, ctsl)
    a.salu("s_mov_b32", sBASE[0], sKV)
    a.salu("s_add_u32", sBASE[1], sKV, 0x4000000)
    WT2 = QL
    a.valu("v_lshrrev_b32", vT[0], 1, vLANE)
    a.valu("v_mul_u32_u24", vW1, 896, vT[0])
    a.valu("v_and_b32", vT[1], 1, vLANE)
    a.valu("v_lshl_add_u32", vW1, vT[1], 4, vW1)
    a.valu("v_mul_u32_u24", vW2, 3584, vT[0])
    a.valu("v_cmp_eq_u32", sSAVE, 1, vT[1])
    a.salu("s_min_u32", sT3, sI, 27)
    a.salu("s_mul_i32", sT0, sX, 512 * 896)
    a.salu("s_lshl_b32", sT1, sT3, 5)
    a.salu("s_add_u32", sT0, sT0, sT1)
    tw = []
    for j in range(16):
        a.salu("s_add_u32", sOFF[j % 4], sT0, j * 32 * 896)
        tw.append(a.bload(WT2[j], vW1, SRD_WO, sOFF[j % 4], 0))
    for c in range(0, 16, 3):
        stage_frags(WT2[c:c + 3], tw[c:c + 3], WOF[c:c + 3], LSTAGE, vTR)
    a.salu("s_mul_i32", sT0, sX, 448)
    a.salu("s_lshl_b32", sT1, sT3, 4)
    a.salu("s_add_u32", sT0, sT0, sT1)
    tw = []
    for j in range(14):
        a.salu("s_add_u32", sOFF[j % 4], sT0, j * 32 * 3584)
        a.salu("s_not_b64", EXEC, sSAVE)
        a.bload(WT2[j], vW2, SRD_G, sOFF[j % 4], 0)
        a.salu("s_mov_b64", EXEC, sSAVE)
        tw.append(a.bload(WT2[j], vW2, SRD_U, sOFF[j % 4], 0))
    a.salu("s_mov_b64", EXEC, -1)
    for c in range(0, 14, 3):
        stage_frags(WT2[c:c + 3], tw[c:c + 3], GUF[c:c + 3], LSTAGE, vTRG)
    a.salu("s_mul_i32", sT0, sX, 224 * 896)
    a.salu("s_lshl_b32", sT1, sT3, 5)
    a.salu("s_add_u32", sT0, sT0, sT1)
    tw = []
    for j in range(7):
        a.salu("s_add_u32", sOFF[j % 4], sT0, j * 32 * 896)
        tw.append(a.bload(WT2[j], vW1, SRD_D, sOFF[j % 4], 0))
    for c in range(0, 7, 3):
        stage_frags(WT2[c:c + 3], tw[c:c + 3], DNF[c:c + 3], LSTAGE, vTR)
    ct.soff_state = [None] * 4
    cS = TileRef(0, 63, "T", 0)
    cR = [TileRef(1, 60 + i, "T", 1 + i) for i in range(4)]
    ct.enqueue(cS)
    for t in cR:
        ct.enqueue(t, ("K",))
    for t in cR:
        ct.enqueue(t, ("V",))
    ct.try_issue()
    ct.load_q(0)
    ct.begin(0)
    ct.group(0, [cS], keep=True)
    ct.publish(0, 0, None)
    ct.load_q(1)
    ct.begin(1)
    ct.group(1, cR, keep=True)
    ct.publish(1, 1, None)
    a.valu("v_mov_b32", vT[4], 0)
    poll_counter(a, vT[4], 256, END)

    def st_combine(b, inst, cnt_idx):
        wait_lds_flag(a, LFLAG + 4 + 4 * cnt_idx, 3, END)
        a.valu("v_add_u32", vT[5], LDS_MISC, vL16)
        a.valu("v_mov_b32", vT[4], LDS_MISC)
        O = [G(4 * w, 4) for w in range(4)]
        ML = [G(16 + 2 * w, 2) for w in range(4)]
        for w in range(4):
            a.ds("ds_read_b128", O[w], vT[5], offset=LPART + b * 4160 + w * 1040)
            a.ds("ds_read_b64", ML[w], vT[4], offset=LPART + b * 4160 + w * 1040 + 1024)
        a.wait_lg()
        M, Lr = V(80), V(81)
        a.valu("v_max3_f32", M, ML[0][0], ML[1][0], ML[2][0])
        a.valu("v_max_f32", M, M, ML[3][0])
        for w in range(4):
            a.valu("v_sub_f32", ML[w][0], ML[w][0], M)
            a.valu("v_mul_f32", ML[w][0], ML[w][0], vC)
            a.valu("v_exp_f32", ML[w][0], ML[w][0])
        a.valu("v_mul_f32", Lr, ML[0][0], ML[0][1])
        for w in range(1, 4):
            a.valu("v_fmac_f32", Lr, ML[w][0], ML[w][1], rmw=True)
        for k in range(4):
            a.valu("v_mul_f32", O[0][k], O[0][k], ML[0][0])
            for w in range(1, 4):
                a.valu("v_fmac_f32", O[0][k], O[w][k], ML[w][0], rmw=True)
        a.valu("v_cvt_pk_bf16_f32", V(82), O[0][0], O[0][1])
        a.valu("v_cvt_pk_bf16_f32", V(83), O[0][2], O[0][3])
        a.salu("s_lshl_b32", sT0, sT2, 9)
        a.salu("s_add_u32", sT0, sT0, H1O + inst * 0x20000)
        a.bstore(V(82, 2), vL8, SRD_WS, sT0, 0, "sc1")
        a.salu("s_lshl_b32", sT0, sT2, 3)
        a.salu("s_add_u32", sT0, sT0, H1ML + inst * 2048)
        a.salu("s_mov_b64", EXEC, 1)
        a.bstore(V(80, 2), vL8, SRD_WS, sT0, 0, "sc1")
        a.salu("s_mov_b64", EXEC, -1)

    def store_cols(D, Hbase):
        a.salu("s_lshl_b32", sT0, sX, 11)
        a.salu("s_lshl_b32", sT1, sI, 6)
        a.salu("s_add_u32", sT0, sT0, sT1)
        a.salu("s_add_u32", sT0, sT0, Hbase)
        a.salu("s_mov_b64", EXEC, sN0)
        a.bstore(D, vG16, SRD_WS, sT0, 0, "sc1")
        a.salu("s_mov_b64", EXEC, -1)

    def st_wo(insts, gbases):
        a.valu("v_lshlrev_b32", vT[0], 9, vNx)
        a.valu("v_add_u32", vT[0], vT[0], vG16)
        a.valu("v_lshlrev_b32", vT[1], 3, vNx)
        loads = []
        so = [sOFF[0], sOFF[1], sOFF[2], sOFF[3], sT1, sT3]
        for k, (inst, gb) in enumerate(zip(insts, gbases)):
            ml = MLR[k]
            a.salu("s_lshl_b32", sT0, sX, 14)
            a.salu("s_add_u32", so[3 * k], sT0, H1O + inst * 0x20000)
            a.salu("s_add_u32", so[3 * k + 1], sT0, H1O + inst * 0x20000 + 8192)
            a.salu("s_lshl_b32", sT0, sX, 8)
            a.salu("s_add_u32", so[3 * k + 2], sT0, H1ML + inst * 2048)
            for hh in range(2):
                for j in range(8):
                    loads.append((gb[8 * hh + j], vT[0], so[3 * k + hh], 64 * j))
                loads.append((ml[2 * hh:2 * hh + 2], vT[1], so[3 * k + 2], 128 * hh))
        poll_gather(a, loads, END, vT[2])
        ct.soff_state = [None] * 4
        for k, (inst, gb) in enumerate(zip(insts, gbases)):
            Dh = [V(32, 4), V(36, 4)]
            for hh in range(2):
                for j in range(8):
                    a.mfma(Dh[hh], WOF[8 * hh + j], gb[8 * hh + j], 0 if j == 0 else Dh[hh])
            cf = [V(40), V(41)]
            for hh in range(2):
                M, Lr = MLR[k][2 * hh], MLR[k][2 * hh + 1]
                t0, t1 = V(42), V(43)
                a.valu("v_mov_b32", t0, M)
                for r in (8, 4, 2, 1):
                    a.valu("v_max_f32_dpp", t0, t0, t0, mod=f"row_ror:{r} row_mask:0xf bank_mask:0xf")
                a.valu("v_sub_f32", cf[hh], M, t0)
                a.valu("v_mul_f32", cf[hh], cf[hh], vC)
                a.valu("v_exp_f32", cf[hh], cf[hh])
                a.valu("v_mul_f32", t1, cf[hh], Lr)
                for r in (8, 4, 2, 1):
                    a.valu("v_add_f32_dpp", t1, t1, t1, mod=f"row_ror:{r} row_mask:0xf bank_mask:0xf")
                a.valu("v_rcp_f32", t1, t1)
                a.valu("v_mul_f32", cf[hh], cf[hh], t1)
            Y = V(44, 4)
            for k in range(4):
                a.valu("v_mul_f32", Y[k], Dh[0][k], cf[0])
                a.valu("v_fmac_f32", Y[k], Dh[1][k], cf[1], rmw=True)
            for r in (8, 4, 2, 1):
                for k in range(4):
                    a.valu("v_add_f32_dpp", Y[k], Y[k], Y[k], mod=f"row_ror:{r} row_mask:0xf bank_mask:0xf")
            store_cols(Y, H2 + inst * 16384)

    def st_resid(bs, insts, Hbase, gbases, xout):
        loads = []
        a.valu("v_add_u32", vT[3], 4096, vL16)
        for k, (inst, gb) in enumerate(zip(insts, gbases)):
            so = [sOFF[2 * k], sOFF[2 * k + 1]]
            a.salu("s_mov_b32", so[0], Hbase + inst * 16384)
            a.salu("s_mov_b32", so[1], Hbase + inst * 16384 + 8192)
            for xx in range(8):
                for hf in range(2):
                    off = (xx % 4) * 2048 + hf * 1024
                    if off < 4096:
                        loads.append((gb[2 * xx + hf], vL16, so[xx // 4], off))
                    else:
                        loads.append((gb[2 * xx + hf], vT[3], so[xx // 4], off - 4096))
        poll_gather(a, loads, END, vT[2])
        ct.soff_state = [None] * 4
        for b, gb, xo in zip(bs, gbases, xout):
            acc = [gb[k // 4][k % 4] for k in range(8)]
            for xx in range(1, 8):
                for k in range(8):
                    a.valu("v_add_f32", acc[k], acc[k], gb[2 * xx + k // 4][k % 4])
            round_bf16(a, acc, vT[0])
            get_x(b, xo)
            for k in range(8):
                a.valu("v_add_f32", xo[k], xo[k], acc[k])
            round_bf16(a, xo, vT[0])
            put_x(b, xo)

    def st_glu1(b, inst, xr):
        layernorm(xr, b, [V(32 + k) for k in range(10)])
        D = V(112, 4)
        gemv_act(GUF, b, D, 48)
        round_bf16(a, [D[k] for k in range(4)], vT[0])
        E = V(116, 4)
        for k in range(4):
            a.valu("v_mov_b32", E[k], D[k])
        for k in range(4):
            a.valu("v_permlane16_swap_b32", D[k], E[k])
        for k in range(4):
            a.valu("v_mul_f32", D[k], D[k], E[k])
        a.valu("v_cvt_pk_bf16_f32", vT[0], D[0], D[1])
        a.valu("v_cvt_pk_bf16_f32", vT[1], D[2], D[3])
        a.valu("v_lshrrev_b32", vT[2], 2, vLANE)
        a.salu("s_lshl_b32", sT0, sX, 9)
        a.salu("s_lshl_b32", sT1, sI, 4)
        a.salu("s_add_u32", sT0, sT0, sT1)
        a.salu("s_add_u32", sT0, sT0, H3 + inst * 4096)
        a.salu("s_mov_b32", S(100), 1)
        a.salu("s_mov_b32", S(101), 1)
        a.salu("s_mov_b64", EXEC, S(100, 2))
        a.bstore(V(vT[0].b, 2), vT[2], SRD_WS, sT0, 0, "sc1")
        a.salu("s_mov_b64", EXEC, -1)

    def st_glu2(insts, gbases):
        loads = []
        for k, (inst, gb) in enumerate(zip(insts, gbases)):
            a.salu("s_lshl_b32", sT0, sX, 9)
            a.salu("s_add_u32", sOFF[k], sT0, H3 + inst * 4096)
            for j in range(7):
                loads.append((gb[j], vG16, sOFF[k], 64 * j))
        poll_gather(a, loads, END, vT[2])
        ct.soff_state = [None] * 4
        for inst, gb in zip(insts, gbases):
            D = V(112, 4)
            for j in range(7):
                a.mfma(D, DNF[j], gb[j], 0 if j == 0 else D)
            store_cols(D, H4 + inst * 16384)

    XO = [V(24 + k) for k in range(8)]

    def mid(b):
        inst = b
        Lskip1, Lskip2 = a.newlabel(), a.newlabel()
        st_combine(b, inst, b)
        a.salu("s_cmp_ge_u32", None, sI, 28)
        a.branch("s_cbranch_scc1", Lskip1)
        st_wo([inst], [QL])
        a.label(Lskip1)
        st_resid([b], [inst], H2, [QL], [XO])
        a.salu("s_cmp_ge_u32", None, sI, 28)
        a.branch("s_cbranch_scc1", Lskip2)
        st_glu1(b, inst, XO)
        st_glu2([inst], [QL])
        a.label(Lskip2)
        st_resid([b], [inst], H4, [QL], [XO])
        layernorm(XO, b, [V(32 + k) for k in range(10)])
        q_publish(b, H5)
        a.salu("s_lshl_b32", sT0, sH, 9)
        a.salu("s_add_u32", sOFF[0], sT0, H5 + 8192 * b)
        poll_gather(a, [(G(0, 2), vL8, sOFF[0], 0)], END, vT[2])
        ct.soff_state = [None] * 4
        q_to_lds(G(0, 2), 2 + b)
        set_lds_flag(a, LFLAG, 2 + b)
        ct.load_q(2 + b)
        ct.begin(b)
        if b == 0:
            ct.group(0, [ct.retained(cS)], keep=True)
        else:
            ct.group(1, [ct.retained(t) for t in cR], keep=True)
        ct.publish(b, b, None)

    mid(0)
    mid(1)
    st_combine(0, 2, 2)
    st_combine(1, 3, 3)
    a.salu("s_cmp_ge_u32", None, sI, 28)
    a.branch("s_cbranch_scc1", END)
    st_wo([2, 3], [QL, QL2])
    XO2 = [V(200 + k) for k in range(8)]
    st_resid([0, 1], [2, 3], H2, [QL, QL2], [XO, XO2])
    st_glu1(0, 2, XO)
    st_glu1(1, 3, XO2)
    st_glu2([2, 3], [QL, QL2])
    a.salu("s_cmp_lg_u32", None, S(2), 0)
    a.branch("s_cbranch_scc1", END)
    st_resid([0, 1], [2, 3], H4, [QL, QL2], [XO, XO2])
    for b, xo in ((0, XO), (1, XO2)):
        P = V(48 + 4 * b, 4)
        for k in range(4):
            a.valu("v_cvt_pk_bf16_f32", P[k], xo[2 * k], xo[2 * k + 1])
        a.bstore(P[0:2], vL8, SRD_OUT, 0, b * 896)
        a.salu("s_mov_b64", EXEC, sL48)
        a.bstore(P[2:4], vL8, SRD_OUT, 0, b * 896 + 512)
        a.salu("s_mov_b64", EXEC, -1)
    a.wait_vm()
    a.lines.append(f"{END}:")
    a.lines.append("    s_endpgm")
    return a


HEADER = f"""; generated by gen/gen.py - persistent decode kernel (see generator for documentation)
; @launch grid=(256,1,1) block=(256,1,1) lds=163840
.amdgcn_target "amdgcn-amd-amdhsa--gfx950"
.text
.globl {NAME}_kernel
.p2align 8
.type {NAME}_kernel,@function
{NAME}_kernel:
"""
FOOTER = f""".section .rodata,"a"
.p2align 6
.amdhsa_kernel {NAME}_kernel
  .amdhsa_next_free_vgpr 512
  .amdhsa_next_free_sgpr 102
  .amdhsa_accum_offset 256
  .amdhsa_group_segment_fixed_size 0
  .amdhsa_kernarg_size 96
  .amdhsa_user_sgpr_count 2
  .amdhsa_user_sgpr_kernarg_segment_ptr 1
  .amdhsa_system_sgpr_workgroup_id_x 1
.end_amdhsa_kernel
"""

if __name__ == "__main__":
    a = gen()
    out = sys.argv[1] if len(sys.argv) > 1 else f"cdna_kernels/{NAME}.s"
    open(out, "w").write(HEADER + a.text() + FOOTER)
    print("instructions:", a.ninstr)
```
